```python
import torch

def _softmax(x, axis=-1):
    return torch.softmax(x, dim=axis)
def _gelu(x):
    return torch.nn.functional.gelu(x, approximate="tanh")
def _silu(x):
    return torch.nn.functional.silu(x)
def _sigmoid(x):
    return torch.sigmoid(x)
def _layernorm(x, axis=-1, eps=1e-5):
    m = x.mean(dim=axis, keepdim=True)
    v = x.var(dim=axis, keepdim=True, unbiased=False)
    return (x - m) / torch.sqrt(v + eps)
def _scatter_add(tgt, idx, src, axis=0):
    return tgt.clone().index_add_(axis, idx, src)
def _segment_sum(src, seg, n):
    out = torch.zeros((n,) + src.shape[1:], dtype=src.dtype)
    return out.index_add_(0, seg, src)
def _pad(x, pw):
    flat = tuple(v for pair in reversed(pw) for v in pair)
    return torch.nn.functional.pad(x, flat)

kernel_name = 'recurrent_scan__ssm_conv_s4d__mixer_channel_mlp__prompt'

def setup_inputs():

    _w = (lambda a: (lambda t: t.to(torch.bfloat16) if t.is_floating_point() else t)(torch.as_tensor(a)))
    def _A_setup():
        Bsz, L, D, N = 1, 2048, 512, 128
        return {
            "u": _w((lambda *s: torch.randn(*s, dtype=torch.bfloat16) * 0.05)(Bsz, L, D)),
            "log_A_real": _w((lambda *s: torch.randn(*s, dtype=torch.bfloat16) * 3.2)(D, N) * 0.5),
            "A_imag": _w((lambda *s: torch.randn(*s, dtype=torch.bfloat16) * 0.2)(D, N) * 3.14),
            "C_real": _w((lambda *s: torch.randn(*s, dtype=torch.bfloat16) * 0.8)(D, N) / N ** 0.5),
            "C_imag": _w((lambda *s: torch.randn(*s, dtype=torch.bfloat16) * 0.8)(D, N) / N ** 0.5),
            "log_dt": _w((lambda *s: torch.randn(*s, dtype=torch.bfloat16) * 0.2)(D) * 0.5 - 4.0),
            "D_skip": _w((lambda *s: torch.randn(*s, dtype=torch.bfloat16) * 0.2)(D)),
        }
    _A_in = _A_setup()

    def _B_setup():
        B, S, D, F = 1, 2048, 512, 1376
        return {
            "x": _w((lambda *s: torch.randn(*s, dtype=torch.bfloat16) * 0.05)(B, S, D)),
            "w1": _w((lambda *s: torch.randn(*s, dtype=torch.bfloat16) * 1.6)(D, F) * (D ** -0.5)),
            "b1": _w((lambda *s: torch.randn(*s, dtype=torch.bfloat16) * 0.8)(F)),
            "w2": _w((lambda *s: torch.randn(*s, dtype=torch.bfloat16) * 0.1)(F, D) * (F ** -0.5)),
            "b2": _w((lambda *s: torch.randn(*s, dtype=torch.bfloat16) * 0.1)(D)),
        }
    _B_in = _B_setup()

    return {
        "A_u": _A_in["u"],
        "A_log_A_real": _A_in["log_A_real"],
        "A_A_imag": _A_in["A_imag"],
        "A_C_real": _A_in["C_real"],
        "A_C_imag": _A_in["C_imag"],
        "A_log_dt": _A_in["log_dt"],
        "A_D_skip": _A_in["D_skip"],
        "B_x": _B_in["x"],
        "B_w1": _B_in["w1"],
        "B_b1": _B_in["b1"],
        "B_w2": _B_in["w2"],
        "B_b2": _B_in["b2"],
    }

def reference(A_u, A_log_A_real, A_A_imag, A_C_real, A_C_imag, A_log_dt, A_D_skip, B_x, B_w1, B_b1, B_w2, B_b2):
    def _A_ref(u, log_A_real, A_imag, C_real, C_imag, log_dt, D_skip):
        L = u.shape[1]
        dt = torch.exp(log_dt)
        A = -torch.exp(log_A_real) + 1j * A_imag
        C = (C_real + 1j * C_imag) * dt[:, None]
        pos = (lambda x, dt: x.to(dt))(torch.arange(L), log_dt.dtype)
        P = torch.exp((A * dt[:, None])[:, :, None] * pos[None, None, :])
        K = 2.0 * torch.einsum("dn,dnl->dl", C, P).real
        L2 = 2 * L
        u_t = (lambda x, *d: x.permute(*d))(u, 0, 2, 1)
        Kf = (lambda x, *a, **k: torch.fft.rfft(x.float(), *a, **k))(K, L2)
        Uf = (lambda x, *a, **k: torch.fft.rfft(x.float(), *a, **k))(u_t, L2)
        y = (lambda x, *a, **k: torch.fft.irfft(x, *a, **k).to(torch.bfloat16))(Uf * Kf[None, :, :], L2)[:, :, :L]
        y = (lambda x, *d: x.permute(*d))(y, 0, 2, 1)
        return y + u * D_skip[None, None, :]

    def _B_ref(x, w1, b1, w2, b2):
        y = _layernorm(x, axis=-1)
        h = _gelu(torch.einsum("bsd,df->bsf", y, w1) + b1)
        return torch.einsum("bsf,fd->bsd", h, w2) + b2

    x = A_u
    xn = _layernorm(x, axis=-1)
    s = _A_ref(xn, A_log_A_real, A_A_imag, A_C_real, A_C_imag, A_log_dt, A_D_skip)
    g = _silu(_B_ref(xn, B_w1, B_b1, B_w2, B_b2))
    return x + s * g
```

```python
import re

REG = re.compile(r'(?<![\w.])(-?)(?:abs\()?([vas])(?:(\d+)|\[(\d+):(\d+)\])')
TRANS = ('v_exp_f32','v_log_f32','v_rcp_f32','v_rsq_f32','v_sqrt_f32','v_sin_f32','v_cos_f32')

def regs_of(tok):
    out = []
    for m in REG.finditer(tok):
        k = m.group(2)
        if m.group(3) is not None: out.append((k, int(m.group(3))))
        else: out += [(k, i) for i in range(int(m.group(4)), int(m.group(5))+1)]
    if re.search(r'\bvcc\b', tok): out += [('s','vcc')]
    if re.search(r'\bvcc_lo\b|\bvcc_hi\b', tok): out += [('s','vcc')]
    if re.search(r'\bexec(_lo|_hi)?\b', tok): out += [('s','exec')]
    if re.search(r'\bm0\b', tok): out += [('s','m0')]
    return out

class Ins:
    def __init__(self, text):
        self.text = text
        t = text.split(';')[0].strip()
        self.label = t.endswith(':')
        self.op = t.split()[0] if t and not self.label else ''
        rest = t[len(self.op):].strip() if self.op else ''
        ops = [o.strip() for o in re.split(r',(?![^\[]*\])', rest)] if rest else []
        self.ops = ops
        op = self.op
        self.kind = ('mfma' if op.startswith('v_mfma') else 'valu' if op.startswith('v_') else 'ds' if op.startswith('ds_')
                     else 'vmem' if op.startswith(('buffer_','global_')) else 'salu' if op.startswith('s_') else 'other')
        R = [regs_of(o) for o in ops]
        d, s = [], []
        self.srcA = self.srcB = self.srcC = []
        if self.kind == 'mfma':
            d = R[0]; self.srcA, self.srcB, self.srcC = R[1], R[2], R[3]; s = R[1]+R[2]+R[3]
            self.passes = 8 if '32x32x16' in op else 4
        elif self.kind == 'valu':
            if 'permlane' in op: d = R[0]+R[1]; s = R[0]+R[1]
            elif op.startswith(('v_add_co','v_sub_co','v_addc_co','v_subb_co')): d = R[0]+R[1]; s = sum(R[2:], [])
            else:
                d = R[0]; s = sum(R[1:], [])
                if op.startswith(('v_fmac','v_dot2c','v_writelane')): s = s + R[0]
        elif self.kind == 'ds':
            if op.startswith(('ds_read','ds_bpermute','ds_permute','ds_swizzle')): d = R[0]; s = sum(R[1:], [])
            else: s = sum(R, [])
        elif self.kind == 'vmem':
            islds = bool(re.search(r'\blds\b', t))
            if ('load' in op) and not islds: d = R[0]; s = sum(R[1:], [])
            else: s = sum(R, [])
            if islds: s = s + [('s','m0')]
            self.islds = islds
        elif self.kind == 'salu':
            if op.startswith(('s_cmp','s_waitcnt','s_barrier','s_branch','s_cbranch','s_nop','s_endpgm','s_setprio','s_sleep')): s = sum(R, [])
            else:
                d = R[0] if R else []; s = sum(R[1:], [])
                if 'saveexec' in op: d = d + [('s','exec')]
        self.d, self.s = set(d), set(s)
        self.states = 1
        if op == 's_nop': self.states = int(ops[0]) + 1
        if self.label or not op: self.states = 0
        self.trans = op.replace('_e32','').replace('_e64','') in TRANS
        self.dot = op.startswith('v_dot')
        self.dpp = 'dpp' in t or 'row_' in t
        self.widestore = self.kind == 'vmem' and 'store' in op and ('x4' in op or 'x3' in op)

def need(p, c):
    n = 0
    pv = {r for r in p.d if r[0] in 'va'}
    ps = {r for r in p.d if r[0] == 's'}
    if p.kind == 'valu':
        if c.kind == 'mfma' and pv & c.s: n = max(n, 2)
        if p.trans and c.kind == 'valu' and not c.trans and pv & c.s: n = max(n, 1)
        if c.op.startswith(('v_readlane','v_readfirstlane')) and pv & c.s: n = max(n, 1)
        if 'permlane' in c.op and pv & c.s: n = max(n, 2)
        if c.kind == 'valu' and c.dpp and pv & c.s: n = max(n, 2)
        if ps:
            if c.kind == 'valu' and ps & c.s: n = max(n, 2)
            if c.kind == 'vmem' and ps & c.s: n = max(n, 5)
            if c.op.startswith(('v_readlane','v_writelane')) and ps & c.s: n = max(n, 4)
            if c.kind == 'salu' and ps & c.s: n = max(n, 1)
        if p.dot and c.kind in ('valu','mfma','ds','vmem') and pv & (c.s | c.d):
            if not (c.op == p.op and pv == c.d and not (pv & (c.s - c.d))): n = max(n, 3)
    if p.kind == 'mfma':
        big = p.passes == 8
        if c.kind == 'mfma':
            if pv & (set(c.srcA) | set(c.srcB)): n = max(n, 12 if big else 8)
            if pv & set(c.srcC):
                if not (set(c.srcC) == pv and c.passes == p.passes): n = max(n, 10 if big else 6)
            elif pv & c.d: n = max(n, 12 if big else 8)
        elif c.kind in ('valu','ds','vmem') and pv & (c.s | c.d): n = max(n, 12 if big else 8)
        if c.kind == 'valu' and set(p.srcC) & c.d: n = max(n, 7 if big else 3)
    if p.kind == 'salu' and ('s','m0') in p.d and c.kind == 'vmem' and getattr(c,'islds',False): n = max(n, 1)
    if p.widestore and c.kind in ('valu','mfma','ds','vmem') and ({r for r in p.s if r[0] in 'va'} & c.d): n = max(n, 2)
    return n

class E:
    def __init__(self):
        self.L = []
        self.vq = []
        self.lq = []
        self.uid = 0
    def __call__(self, text, tag=None):
        for line in text.strip('\n').split('\n'):
            line = line.strip()
            if not line: continue
            i = Ins(line); self.L.append(i)
            if i.kind == 'vmem': self.vq.append(tag)
            if i.kind == 'ds': self.lq.append(tag)
            if i.op.startswith(('s_load','s_memtime','s_memrealtime')): self.lq.append('SMEM')
    def label(self, name): self(name + ':')
    def newlabel(self, p):
        self.uid += 1; return f"L{p}_{self.uid}"
    @staticmethod
    def _n(q, tags):
        idx = [k for k, t in enumerate(q) if t in tags]
        if not idx: return None
        return len(q) - 1 - idx[-1]
    def wait(self, vm=None, lg=None):
        parts = []
        if vm is not None:
            n = 0 if vm == 0 else self._n(self.vq, vm if isinstance(vm,(list,tuple,set)) else [vm])
            if n is not None:
                n = min(n, 63)
                if len(self.vq) > n:
                    parts.append(f"vmcnt({n})"); self.vq = self.vq[len(self.vq)-n:] if n else []
        if lg is not None:
            n = 0 if lg == 0 else self._n(self.lq, lg if isinstance(lg,(list,tuple,set)) else [lg])
            if n is not None:
                if 'SMEM' in self.lq: n = 0
                n = min(n, 15)
                if len(self.lq) > n:
                    parts.append(f"lgkmcnt({n})"); self.lq = self.lq[len(self.lq)-n:] if n else []
        if parts: self("s_waitcnt " + " ".join(parts))
    def snapshot(self): return (list(self.vq), list(self.lq))
    def restore(self, s): self.vq, self.lq = list(s[0]), list(s[1])
    def finish(self):
        def req_for(c, pre):
            req = 0; dist = 0
            for p in pre:
                if dist >= 20: break
                if p.states == 0: continue
                n = need(p, c)
                if n > dist: req = max(req, n - dist)
                dist += p.states
            return req
        out = []; nops = 0
        for c in self.L:
            if c.states:
                req = req_for(c, reversed(out[-64:]))
                if req:
                    out.append(Ins(f"s_nop {req-1}")); nops += 1
            out.append(c)
        changed = True
        while changed:
            changed = False
            lab = {i.text.split(':')[0].strip(): k for k, i in enumerate(out) if i.label}
            for k, b in enumerate(out):
                if b.op.startswith(('s_branch','s_cbranch')) and b.ops[0] in lab:
                    j = lab[b.ops[0]]
                    seq = out[max(0,k-64):k+1]
                    for c in out[j+1:j+40]:
                        if c.states:
                            req = req_for(c, reversed(seq))
                            if req:
                                out.insert(j+1, Ins(f"s_nop {req-1}")); nops += 1; changed = True; break
                        seq = seq + [c]
                        if c.op in ('s_branch','s_endpgm'): break
                    if changed: break
        self.nops = nops
        return "\n".join(("" if i.label else "    ") + i.text for i in out) + "\n"

def merge(e, main, side, start=0, end=None):
    end = len(main) if end is None else end
    n = max(end - start, 1); k = 0
    for i, m in enumerate(main):
        emit_item(e, m)
        if start <= i < end:
            want = ((i - start + 1) * len(side)) // n
            while k < want:
                emit_item(e, side[k]); k += 1
    while k < len(side):
        emit_item(e, side[k]); k += 1

def emit_item(e, m):
    if callable(m): m()
    elif isinstance(m, tuple): e(m[0], m[1])
    else: e(m)
```

```python
import sys, math, struct
from emit import E, merge, emit_item

NAME = "recurrent_scan__ssm_conv_s4d__mixer_channel_mlp__prompt"
def fbits(x): return "0x%08x" % struct.unpack("<I", struct.pack("<f", x))[0]

SL, WREG, S = 28672, 7168, 114688
KC, KCS = S, 16912
STG, EX = S, S + 18432
T3C = S + 33824
BLK = S + 36896
KM, T3M, ST, CS, U = BLK, BLK + 4352, BLK + 4992, BLK + 6016, BLK
SS = S
LDS_BYTES = 163840
FX, FH, FS = 0, 4096, 8192
UT, STB, HB, DBGW = 0x10000, 0x210000, 0x410000, 0xA00000
WSN = 0x10000000
X, W1, W2, WS, OUT, DBG = "s[36:39]", "s[40:43]", "s[44:47]", "s[48:51]", "s[52:55]", "s[56:59]"
sW, sTB, sCB, sTQ, sDQ, sWREG, sXB, sWB, sODD, sGS = ("s%d" % i for i in range(60, 70))
sMK = ["s[70:71]", "s[72:73]", "s[74:75]"]
sROT, sX1, sX2, sW1o, sDT, sDS, sW2B = ("s%d" % i for i in range(76, 83))
sT0, sT1, sT2, sT3 = "s3", "s83", "s18", "s19"
sG = "s[84:85]"; sL2E = "s86"; sSPIN = "s87"; sH0, sH1 = "s88", "s89"
sA, sB, sC, sD = "s90", "s91", "s92", "s93"
sONE = "s94"
vL = 1; vXD = [2, 3]; vWD = [4, 5, 6]; vW2D = 7
vXR = [[8,9,10,11],[12,13,14,15]]; vWR = [[16,17,18,19],[20,21,22,23]]
vBOX = [24, 28]; vXQ = 32; vB1 = 40; vSS = 43; vCSA = 44; vF0 = 47
ACC = 48; BF = [96, 112]; A0 = [128, 140]; AS = [152, 164]
vL16 = 176 + 70
vONE1 = 247
vJ = 254; vST = 255
def v(a, n=1): return f"v{a}" if n == 1 else f"v[{a}:{a+n-1}]"
def a(x, n=1): return f"a{x}" if n == 1 else f"a[{x}:{x+n-1}]"

class G:
    def __init__(self, stop=None, stamps=False, rot="xcd", dump=None, opt=None):
        self.e = E(); self.stop = stop; self.stamps = stamps; self.rot = rot; self.dump = dump; self.nst = 0
        self.opt = opt or {}
        self.stnames = []
    def stamp(self, name, real=False):
        if not self.stamps: return
        e = self.e
        e(f"s_memrealtime s[98:99]" if real else "s_memtime s[98:99]"); e.wait(lg=0)
        e(f"v_writelane_b32 v{vST}, s98, {self.nst}"); self.stnames.append(name); self.nst += 1
    def stop_here(self, name):
        if self.stop == name:
            self.e("s_branch Lfin"); return True
        return False

    def chunk_items(self, c):
        slot = c & 3; t = f"c{c}"
        it = [f"s_add_u32 {sT0}, {sROT}, {c}\ns_and_b32 {sT0}, {sT0}, 7\ns_lshl_b32 {sX1}, {sT0}, 7\ns_add_u32 {sX1}, {sX1}, {sXB}\n"
              f"s_add_u32 {sX2}, {sX1}, 14336\ns_mul_i32 {sW1o}, {sT0}, 176128\ns_add_u32 {sW1o}, {sW1o}, {sWB}"]
        for i in range(4):
            pre = f"s_add_u32 m0, {sWREG}, {slot*SL}\n" if i == 0 else ""
            it.append((pre + f"buffer_load_dwordx4 v{vXD[i&1]}, {X}, {sX1 if i < 2 else sX2} offen offset:{1024*i} lds", t))
        for i in range(3):
            pre = f"s_add_u32 m0, {sWREG}, {slot*SL+4096}\n" if i == 0 else ""
            it.append((pre + f"s_mov_b64 exec, {sMK[i]}\nbuffer_load_dwordx4 v{vWD[i]}, {W1}, {sW1o} offen offset:{1024*i} lds\ns_mov_b64 exec, -1", t))
        return it
    @staticmethod
    def w2pos(j):
        p = j if j < 28 else j - 28
        return p // 7, p % 7
    def w2_items(self, js):
        it = []; lastm0 = None
        for j in js:
            slot, pos = self.w2pos(j)
            m0 = slot*SL + (4096 if pos >= 4 else 0); imm = (pos & 3)*1024
            pre = f"s_add_u32 m0, {sWREG}, {m0}\n" if m0 != lastm0 else ""
            lastm0 = m0
            so = (64*(j >> 1) + 8*(j & 1))*1024 - imm
            it.append((pre + f"s_add_u32 {sT1}, {sW2B}, {so & 0xffffffff}\nbuffer_load_dwordx4 v{vW2D}, {W2}, {sT1} offen offset:{imm} lds", f"w2_{j}"))
        return it
    def flag_store(self, soff, tag):
        self.e(f"s_mov_b64 exec, 1\nbuffer_store_dword v{vONE1}, off, {WS}, {soff} sc1\ns_mov_b64 exec, -1", tag)
    def poll_issue(self, vt, vaddr, srd, tag):
        self.e(f"buffer_load_dword v{vt}, v{vaddr}, {srd}, 0 offen sc1", tag)
    def poll_check(self, vt, vaddr, srd, tag):
        e = self.e
        e.wait(vm=tag)
        Ld, Ll = e.newlabel("ok"), e.newlabel("spin")
        e(f"v_cmp_ne_u32 vcc, 1, v{vt}\ns_mov_b32 {sSPIN}, 0\ns_cmp_eq_u64 vcc, 0\ns_cbranch_scc1 {Ld}")
        snap = e.snapshot()
        e.label(Ll)
        e(f"buffer_load_dword v{vt}, v{vaddr}, {srd}, 0 offen sc1\ns_add_u32 {sSPIN}, {sSPIN}, 1\ns_waitcnt vmcnt(0)\n"
          f"v_cmp_ne_u32 vcc, 1, v{vt}\ns_cmp_gt_u32 {sSPIN}, 0x40000\ns_cbranch_scc1 {Ld}\ns_cmp_eq_u64 vcc, 0\ns_cbranch_scc0 {Ll}")
        e.restore(snap)
        e.label(Ld)

    def prologue(self):
        e = self.e
        e(f"""
s_load_dwordx16 s[4:19], s[0:1], 0
s_load_dwordx8 s[20:27], s[0:1], 64
s_load_dwordx4 s[28:31], s[0:1], 96
s_load_dwordx2 s[32:33], s[0:1], 112
s_cmp_ge_u32 s2, 256
s_cbranch_scc1 Lend
v_lshrrev_b32 v{vF0}, 6, v0
v_and_b32 v{vL}, 63, v0
s_getpc_b64 s[34:35]
Lpc:
v_readfirstlane_b32 {sW}, v{vF0}
s_and_b32 {sT0}, s2, 7
s_lshr_b32 {sT1}, s2, 3
s_lshl_b32 {sA}, {sT1}, 3
s_lshl_b32 {sB}, {sW}, 1
s_add_u32 {sA}, {sA}, {sB}
v_add_u32 v2, {sA}, v{vL}
v_lshlrev_b32 v2, 7, v2
v_min_u32 v2, Lcodeend-Lpc-4, v2
s_mov_b64 exec, 3
""")
        e(f"global_load_dword v{vJ}, v2, s[34:35]", "touch")
        e(f"""
s_mov_b64 exec, -1
s_lshl_b32 {sA}, s2, 9
v_lshl_add_u32 v100, v0, 1, {sA}
s_lshr_b32 {sA}, {sT1}, 3
s_and_b32 {sDQ}, {sT1}, 7
s_lshl_b32 {sTQ}, {sT0}, 2
s_add_u32 {sTQ}, {sTQ}, {sA}
s_lshr_b32 {sB}, {sT0}, 1
s_lshl_b32 {sTB}, {sB}, 2
s_add_u32 {sTB}, {sTB}, {sA}
s_and_b32 {sC}, {sT0}, 1
s_lshl_b32 {sCB}, {sC}, 3
s_add_u32 {sCB}, {sCB}, {sDQ}
""")
        if self.rot == "xcd":
            e(f"s_lshl_b32 {sB}, {sB}, 1\ns_lshl_b32 {sC}, {sC}, 2\ns_add_u32 {sROT}, {sB}, {sC}")
        elif self.rot == "wg":
            e(f"s_add_u32 {sROT}, {sTB}, {sCB}")
        else:
            e(f"s_mov_b32 {sROT}, 0")
        e(f"""
s_mul_i32 {sA}, {sCB}, 11
s_mul_i32 {sB}, {sCB}, 10
s_add_u32 {sB}, {sB}, 12
s_min_u32 {sGS}, {sA}, {sB}
s_and_b32 {sODD}, {sGS}, 1
s_mul_i32 {sWREG}, {sW}, {WREG}
s_lshl_b32 {sXB}, {sTB}, 17
s_lshl_b32 {sA}, {sW}, 15
s_add_u32 {sXB}, {sXB}, {sA}
s_mul_i32 {sWB}, {sW}, {16*2752}
s_lshl_b32 {sA}, {sGS}, 4
s_add_u32 {sWB}, {sWB}, {sA}
v_lshrrev_b32 v101, 3, v{vL}
v_lshrrev_b32 v102, 4, v{vL}
v_and_b32 v103, 7, v{vL}
v_xor_b32 v104, v102, v103
v_lshlrev_b32 v104, 4, v104
v_lshl_add_u32 v{vXD[0]}, v101, 10, v104
v_xor_b32 v{vXD[1]}, 64, v{vXD[0]}
v_add_u32 v{vXD[1]}, 7168, v{vXD[1]}
s_movk_i32 {sA}, 2752
""")
        for i in range(3):
            e(f"""
v_add_u32 v105, {64*i}, v{vL}
v_mul_u32_u24 v106, 171, v105
v_lshrrev_b32 v106, 11, v106
v_mad_i32_i24 v105, v106, -12, v105
v_add_u32 v105, {sODD}, v105
v_subrev_u32 v107, 11, v105
v_min_u32 v105, v105, v107
v_mul_u32_u24 v106, {sA}, v106
v_lshl_add_u32 v{vWD[i]}, v105, 4, v106
""")
            if i: e(f"v_subrev_u32 v{vWD[i]}, {1024*i}, v{vWD[i]}")
        masks = []
        for i in range(3):
            m = (1 << 64) - 1
            for l in range(64):
                if (64*i + l) % 12 == 11: m &= ~(1 << l)
            masks.append(m)
            e(f"s_mov_b32 s{70+2*i}, 0x{m & 0xffffffff:x}\ns_mov_b32 s{71+2*i}, 0x{m >> 32:x}")
        e(f"""
s_mov_b32 s38, 2097152
s_mov_b32 s39, 0x20000
s_mov_b32 s42, 1409024
s_mov_b32 s43, 0x20000
s_mov_b32 s50, {WSN}
s_mov_b32 s51, 0x20000
s_lshl_b32 {sA}, s2, 2
""")
        e.wait(lg=0)
        for k in range(4):
            e(f"global_load_short_d16_hi v{96+k}, v100, s[{6+2*k}:{7+2*k}]", "par")
        e(f"""
s_load_dword {sDT}, s[14:15], {sA}
s_load_dword {sDS}, s[16:17], {sA}
s_mov_b64 s[36:37], s[4:5]
s_mov_b64 s[40:41], s[20:21]
s_mov_b64 s[48:49], s[32:33]
""")
        for it in self.chunk_items(0): emit_item(e, it)
        e(f"""
s_cmp_eq_u32 s2, 0
s_cselect_b32 {sA}, 0, {WSN}
v_mov_b32 v108, 0
v_mov_b32 v109, 0
v_mov_b32 v110, 0
v_mov_b32 v111, 0
v_lshlrev_b32 v105, 4, v0
s_add_u32 {sB}, {sA}, 4096
s_add_u32 {sC}, {sA}, 8192
""")
        for sx in (sA, sB, sC):
            e(f"buffer_store_dwordx4 v[108:111], v105, {WS}, {sx} offen sc1", "zero")
        e(f"""
s_mov_b64 s[44:45], s[24:25]
s_mov_b32 s46, 1409024
s_mov_b32 s47, 0x20000
s_mov_b64 s[52:53], s[28:29]
s_mov_b32 s54, 2097152
s_mov_b32 s55, 0x20000
s_mov_b64 s[56:57], s[30:31]
s_mov_b32 s58, 256
s_mov_b32 s59, 0x20000
s_mov_b32 {sL2E}, 0x3fb8aa3b
s_mov_b32 {sONE}, 0x3f803f80
v_mov_b32 v{vONE1}, 1
v_lshlrev_b32 v{vL16}, 4, v{vL}
v_add_u32 v106, {BLK}, v105
ds_write_b128 v106, v[108:111]
v_add_u32 v106, 4096, v105
v_min_u32 v106, 4976, v106
v_add_u32 v106, {BLK}, v106
ds_write_b128 v106, v[108:111]
v_mov_b32 v112, {sONE}
v_mov_b32 v113, {sONE}
v_mov_b32 v114, {sONE}
v_mov_b32 v115, {sONE}
v_and_b32 v116, 15, v{vL}
v_mul_u32_u24 v106, {SL}, v102
v_mul_u32_u24 v107, 192, v116
v_add3_u32 v106, v106, v107, {sWREG}
ds_write_b128 v106, v[112:115] offset:{4096+176}
v_lshrrev_b32 v117, 5, v{vL}
v_and_b32 v118, 31, v{vL}
v_bfe_u32 v106, v{vL}, 1, 3
s_lshl_b32 {sA}, {sW}, 1
v_xor_b32 v106, v106, v117
v_xor_b32 v106, {sA}, v106
v_lshlrev_b32 v106, 4, v106
v_lshl_add_u32 v106, v118, 7, v106
v_add_u32 v{vXR[0][0]}, {sWREG}, v106
""")
        for s in range(1, 4): e(f"v_xor_b32 v{vXR[0][s]}, {32*s}, v{vXR[0][0]}")
        e(f"""
v_bfe_u32 v106, v{vL}, 2, 2
v_lshl_add_u32 v106, v117, 3, v106
v_mul_u32_u24 v106, 192, v106
v_and_b32 v107, 1, v102
v_lshl_add_u32 v106, v107, 5, v106
v_and_b32 v119, 3, v{vL}
v_lshl_add_u32 v106, v119, 3, v106
""")
        for s in range(4):
            e(f"s_xor_b32 {sA}, {sW}, {s}\ns_mul_i32 {sA}, {sA}, {WREG}\ns_add_u32 {sA}, {sA}, 4096\nv_add_u32 v{vWR[0][s]}, {sA}, v106")
        for s in range(4):
            e(f"v_add_u32 v{vXR[1][s]}, {2*SL}, v{vXR[0][s]}\nv_add_u32 v{vWR[1][s]}, {2*SL}, v{vWR[0][s]}")
        e(f"""
v_lshlrev_b32 v107, 2, v107
v_xor_b32 v107, v107, v103
v_lshlrev_b32 v107, 4, v107
v_lshl_add_u32 v{vW2D}, v101, 10, v107
s_lshl_b32 {sW2B}, {sW}, 14
s_lshl_b32 {sA}, {sDQ}, 7
s_add_u32 {sW2B}, {sW2B}, {sA}
v_mov_b32 v{vSS}, 0
v_mov_b32 v{vCSA}, 0
v_mov_b32 v{vCSA+1}, 0
v_mov_b32 v{vCSA+2}, 0
""")
        e(f"""
v_lshlrev_b32 v106, 3, v102
v_sub_u32 v106, v106, v116
v_add_u32 v106, 16, v106
s_mov_b32 {sB}, 0
""")
        for k, pat in enumerate((0xFE000000, 0x01FF0000)):
            e(f"""
s_mov_b32 {sA}, 0x{pat:x}
v_lshrrev_b64 v[108:109], v106, s[90:91]
v_and_b32 v108, 0xff, v108
v_lshl_or_b32 v108, v108, 15, v108
""")
            for j in range(4):
                e(f"v_and_b32 v110, 0x{0x10001 << (2*j):x}, v108\nv_mul_u32_u24 v{vBOX[k]+j}, 0x{0x3f80 >> (2*j):x}, v110")
        e(f"""
s_mul_i32 {sA}, {sW}, 4608
s_add_u32 {sA}, {sA}, {STG}
v_lshl_add_u32 v120, v{vL}, 2, {sA}
v_mul_u32_u24 v121, 288, v116
v_lshl_add_u32 v121, v102, 4, v121
v_add_u32 v121, {sA}, v121
s_mul_i32 {sA}, {sW}, 3072
s_add_u32 {sA}, {sA}, {EX}
v_add_u32 v122, {sA}, v{vL16}
s_xor_b32 {sA}, {sW}, 1
s_mul_i32 {sA}, {sA}, 3072
s_add_u32 {sA}, {sA}, {EX}
v_add_u32 v123, {sA}, v{vL16}
v_lshrrev_b32 v106, 3, v116
v_bfe_u32 v107, v{vL}, 2, 1
v_lshl_add_u32 v106, v107, 3, v106
v_sub_u32 v107, 3, v119
v_lshl_add_u32 v106, v107, 1, v106
v_lshlrev_b32 v106, 4, v106
s_lshr_b32 {sB}, {sW}, 1
s_mul_i32 {sA}, {sB}, 2176
s_add_u32 {sA}, {sA}, {KM}
v_sub_u32 v106, {sA}, v106
v_and_b32 v107, 1, v102
v_lshlrev_b32 v108, 8, v117
v_lshl_add_u32 v108, v107, 3, v108
v_sub_u32 v124, v106, v108
v_add_u32 v124, 2100, v124
v_lshlrev_b32 v108, 8, v107
v_lshlrev_b32 v108, v117, v108
v_mul_u32_u24 v109, {2*788 - 2*536 + 256}, v117
v_add_u32 v108, v108, v109
v_sub_u32 v125, v106, v108
v_add_u32 v125, {2*788}, v125
s_mul_i32 {sA}, {sB}, 320
s_add_u32 {sA}, {sA}, {T3M + 120}
v_mul_u32_u24 v108, 160, v117
v_lshlrev_b32 v109, 4, v116
v_lshl_add_u32 v109, v107, 3, v109
v_sub_u32 v108, v108, v109
v_add_u32 v126, {sA}, v108
""")
        for it in self.chunk_items(1): emit_item(e, it)

    def kgen(self):
        e = self.e
        LA, AI, CR, CI = 96, 97, 98, 99
        def cmul(d, x, y):
            return [f"v_pk_mul_f32 {v(d,2)}, {v(x,2)}, {v(y,2)} op_sel:[0,0] op_sel_hi:[0,1]",
                    f"v_pk_fma_f32 {v(d,2)}, {v(x,2)}, {v(y,2)}, {v(d,2)} op_sel:[1,1,0] op_sel_hi:[1,0,1] neg_lo:[0,1,0]"]
        self.stamp("setup")
        e.wait(vm="par", lg=0)
        self.stamp("params")
        e(f"""
s_lshr_b32 {sA}, {sW}, 1
s_lshl_b32 {sA}, {sA}, 4
s_lshr_b32 {sDT}, {sDT}, {sA}
s_lshl_b32 {sDT}, {sDT}, 16
s_lshr_b32 {sDS}, {sDS}, {sA}
s_lshl_b32 {sDS}, {sDS}, 16
s_mov_b32 {sB}, 0x32a57060
v_mov_b32 v100, {sDT}
v_mul_f32 v101, {sL2E}, v100
v_mul_f32 v102, {sL2E}, v{LA}
v_fma_f32 v103, v100, {sL2E}, -v101
v_fma_f32 v104, v{LA}, {sL2E}, -v102
v_exp_f32 v101, v101
v_exp_f32 v102, v102
v_fma_f32 v103, v100, {sB}, v103
v_fma_f32 v104, v{LA}, {sB}, v104
v_mul_f32 v103, 0x3f317218, v103
v_mul_f32 v104, 0x3f317218, v104
v_fma_f32 v101, v101, v103, v101
v_fma_f32 v102, v102, v104, v102
v_cvt_pk_bf16_f32 v101, 0, v101
v_cvt_pk_bf16_f32 v102, 0, v102
v_mul_f32 v103, v{AI}, v101
v_mul_f32 v102, v102, v101
v_add_f32 v100, v101, v101
v_mul_f32 v103, 0.15915494, v103
v_mul_f32 v102, {fbits(-math.log2(math.e))}, v102
""")
        W1_, W8, W128, W2_, W4, G0, G128, G256, P, Q = 128, 130, 132, 134, 136, 138, 140, 142, 144, 146
        e(f"v_pk_mul_f32 {v(G0,2)}, v[98:99], v[100:101] op_sel_hi:[1,0]")
        for d, p in ((W8, 8), (W1_, 1), (W128, 128)):
            if p == 1: e("v_fract_f32 v105, v103\nv_exp_f32 v104, v102")
            else: e(f"v_mul_f32 v105, {fbits(p)}, v103\nv_mul_f32 v104, {fbits(p)}, v102\nv_fract_f32 v105, v105\nv_exp_f32 v104, v104")
            e(f"v_cos_f32 v{d}, v105\nv_sin_f32 v{d+1}, v105\ns_nop 0\nv_pk_mul_f32 {v(d,2)}, {v(d,2)}, v[104:105] op_sel_hi:[1,0]")
        cv = [148, 149, 150]; cnt = [0]
        def put(src, row, neg):
            r = cv[cnt[0] % 3]; cnt[0] += 1
            return [f"v_cvt_pk_bf16_f32 v{r}, v{src}, {'-' if neg else ''}v{src+1}", (f"ds_write_b32 v120, v{r} offset:{288*row}", "kw")]
        def rowf(b): return (b & 1)*8 + ((b >> 3) & 1)*4 + 3 - ((b >> 1) & 3)
        FF, CF = 152, 168
        D = [184, 188, 192]
        def reads(base, tag): return [(f"ds_read_b128 {v(base+4*s,4)}, v121 offset:{64*s}", tag) for s in range(4)]
        def mm(t):
            out = [lambda: e.wait(lg=f"cf{t}")]
            for s in range(4):
                A_, B_ = (CF+4*s, FF+4*s) if t < 2 else (FF+4*s, CF+4*s)
                out.append(f"v_mfma_f32_16x16x32_bf16 {v(D[t],4)}, {v(A_,4)}, {v(B_,4)}, {v(D[t],4) if s else 0}")
            return out
        M = []
        M += ["v_mov_b32 v151, 0x3f80", (f"ds_write_b32 v120, v151 offset:{288*rowf(0)}", "kw")] + put(W8, rowf(1), False)
        prev = W8
        for b in range(2, 16):
            d = P if prev != P else Q
            M += cmul(d, prev, W8) + put(d, rowf(b), False); prev = d
        M += reads(FF, "ff")
        M += cmul(W2_, W1_, W1_) + cmul(G128, G0, W128) + cmul(W4, W2_, W2_)
        def chain(start, w, n, rows):
            out = []; prev = start
            for k in range(n):
                d = P if prev != P else Q
                out += cmul(d, prev, w) + put(d, rows[k], True); prev = d
            return out
        r0 = lambda a_, eps: 8*a_ + 4*(eps >> 2) + 3 - (eps & 3)
        M += put(G0, r0(0,0), True) + chain(G0, W1_, 7, [r0(0,k) for k in range(1,8)])
        M += put(G128, r0(1,0), True) + chain(G128, W1_, 7, [r0(1,k) for k in range(1,8)])
        M += reads(CF, "cf0")
        M += cmul(G256, G128, W128) + chain(G256, W2_, 4, [3-k for k in range(4)])
        M += mm(0)
        M += cmul(G0, G256, W128) + chain(G0, W2_, 4, [7-k for k in range(4)])
        base = G0
        for a_ in range(4):
            nb = G128 if base == G0 else G0
            M += cmul(nb, base, W128) + put(nb, 8+2*a_+1, True) + cmul(P, nb, W4) + put(P, 8+2*a_, True)
            base = nb
        M += reads(CF, "cf1")
        nb = G128 if base == G0 else G0
        M += cmul(nb, base, W128) + put(nb, 8, True) + put(G256, 9, True) + cmul(P, nb, W8) + put(P, 0, True)
        M += mm(1)
        M += chain(P, W128, 7, list(range(1, 8)))
        M += reads(CF, "cf2") + mm(2)
        side = self.chunk_items(2) + self.chunk_items(3)
        merge(e, M, side, 10, len(M) - 30)
        for t in range(3): e(f"ds_write_b128 v122, {v(D[t],4)} offset:{1024*t}", "ex")
        e(f"v_cmp_eq_u32 vcc, 3, v{vL}\nv_mov_b32 v100, {sDS}\ns_and_b32 {sA}, {sW}, 1\nv_cndmask_b32 v100, 0, v100, vcc\ns_cmp_eq_u32 {sA}, 1")
        e.wait(lg=0)
        e("s_barrier\ns_cbranch_scc1 Lk_odd")
        snap = e.snapshot()
        e(f"ds_read_b128 v[104:107], v123", "x0"); e(f"ds_read_b128 v[108:111], v123 offset:2048", "x2")
        e(f"v_add_f32 v{D[0]+3}, v{D[0]+3}, v100")
        e.wait(lg="x0")
        e(f"""
v_pk_add_f32 v[104:105], v[104:105], {v(D[0],2)}
v_pk_add_f32 v[106:107], v[106:107], {v(D[0]+2,2)}
v_cvt_pk_bf16_f32 v104, v104, v105
v_cvt_pk_bf16_f32 v105, v106, v107
ds_write2_b32 v124, v104, v105 offset1:1
""")
        e.wait(lg="x2")
        e(f"""
v_pk_add_f32 v[108:109], v[108:109], {v(D[2],2)}
v_pk_add_f32 v[110:111], v[110:111], {v(D[2]+2,2)}
s_lshr_b32 {sB}, {sW}, 1
s_mul_i32 {sA}, {sB}, 2176
s_add_u32 {sA}, {sA}, {KM}
v_mov_b32 v116, {sA}
v_cvt_pk_bf16_f32 v108, v108, v109
v_cvt_pk_bf16_f32 v109, v110, v111
v_cvt_pk_bf16_f32 v112, 0, v111
v_cvt_pk_bf16_f32 v113, v111, v111
v_cvt_pk_bf16_f32 v114, v111, v111
v_cvt_pk_bf16_f32 v115, v111, v111
s_mov_b32 exec_lo, 0x00ff00ff
s_mov_b32 exec_hi, 0x00ff00ff
ds_write_b64 v126, v[108:109]
s_mov_b64 exec, 0x100
ds_write_b128 v116, v[112:115] offset:48
s_mov_b64 exec, 0x200
ds_write_b32 v116, v113 offset:1592
s_mov_b64 exec, -1
s_branch Lk_done
""")
        e.restore(snap)
        e.label("Lk_odd")
        e(f"ds_read_b128 v[104:107], v123 offset:1024", "x1")
        e.wait(lg="x1")
        e(f"""
v_pk_add_f32 v[104:105], v[104:105], {v(D[1],2)}
v_pk_add_f32 v[106:107], v[106:107], {v(D[1]+2,2)}
v_cvt_pk_bf16_f32 v108, v104, v104
v_cvt_pk_bf16_f32 v109, v104, v105
v_cvt_pk_bf16_f32 v110, v105, v105
v_cvt_pk_bf16_f32 v111, v105, v105
v_cvt_pk_bf16_f32 v112, v106, v106
v_cvt_pk_bf16_f32 v113, v106, v107
v_cvt_pk_bf16_f32 v114, v107, v107
v_cvt_pk_bf16_f32 v115, v107, v107
s_mov_b32 exec_lo, 0
ds_write_b128 v125, v[108:111] offset:256
ds_write_b128 v125, v[112:115]
s_mov_b32 exec_lo, -1
s_mov_b32 exec_hi, 0
ds_write2_b64 v125, v[108:109], v[112:113] offset1:1
s_mov_b64 exec, -1
""")
        e.label("Lk_done")
        e.lq = ["km"]*8
        self.stamp("kgen")

    def dots(self, c):
        out = []
        for r in range(16): out.append(f"v_dot2c_f32_bf16 v{vSS}, v{BF[c&1]+r}, v{BF[c&1]+r}")
        cs = [f"v_dot2c_f32_bf16 v{vCSA+T}, {sONE}, v{A0[c&1]+4*T+r}" for r in range(4) for T in range(3)]
        res = []
        for k in range(16):
            res.append(out[k])
            if k < 12: res.append(cs[k])
        return res
    def gemm1(self):
        e = self.e
        for c in range(8):
            slot = c & 3; hi = 1 if slot == 3 else 0; so = (slot - 2*hi)*SL
            def rdB(s): return (f"ds_read_b128 {v(BF[c&1]+4*s,4)}, v{vXR[hi][s]} offset:{so}", f"s{s}")
            def Areg(s): return A0[c&1] if s == 0 else AS[(s+1) & 1]
            def rdA(s, T): return [(f"ds_read_b64_tr_b16 {v(Areg(s)+4*T+2*hh,2)}, v{vWR[hi][s]} offset:{so+768*hh+64*T}", f"s{s}") for hh in range(2)]
            def mf(s, T):
                first = (c == 0 and s == 0)
                return f"v_mfma_f32_32x32x16_bf16 {v(ACC+16*T,16)}, {v(Areg(s)+4*T,4)}, {v(BF[c&1]+4*s,4)}, {0 if first else v(ACC+16*T,16)}"
            e.wait(vm=f"c{c}", lg=0)
            e("s_barrier")
            if c in (0, 1, 4, 7): self.stamp(f"g1_c{c}")
            for s in (0, 1):
                emit_item(e, rdB(s))
                for T in range(3):
                    for it in rdA(s, T): emit_item(e, it)
            if c > 0:
                for it in self.dots(c-1): e(it)
            side = []
            if 1 <= c <= 4: side = self.chunk_items(c+3)
            elif c >= 5: side = self.w2_items(range(7*(c-5), 7*(c-4)))
            if c == 1:
                side = [(f"s_cmp_eq_u32 s2, 0\ns_cselect_b32 {sA}, 0, 4096\ns_lshl_b32 {sB}, {sW}, 2\ns_add_u32 {sA}, {sA}, {sB}\n"
                         f"s_mov_b64 exec, 1\nbuffer_store_dword v{vONE1}, off, {DBG}, {sA} sc1\ns_mov_b64 exec, -1", "f0st")] + side
            if c == 4: side = side + self.aux_items()
            if c == 6:
                side = side + [f"v_and_b32 v200, 3, v{vL}\nv_lshlrev_b32 v200, 2, v200",
                               (f"buffer_load_dword v{vF0}, v200, {DBG}, 0 offen sc1", "f0")]
            k = 0
            def sides(n):
                nonlocal k
                for _ in range(n):
                    if k < len(side): emit_item(e, side[k]); k += 1
            e.wait(lg="s0")
            for T in range(3):
                e(mf(0, T))
                if T == 0: emit_item(e, rdB(2))
                for it in rdA(2, T): emit_item(e, it)
            e.wait(lg="s1")
            for T in range(3):
                e(mf(1, T))
                if T == 0: emit_item(e, rdB(3))
                for it in rdA(3, T): emit_item(e, it)
            per = (len(side) + 5)//6
            e.wait(lg="s2")
            for T in range(3): e(mf(2, T)); sides(per)
            e.wait(lg="s3")
            for T in range(3): e(mf(3, T)); sides(per)
            sides(99)
    def aux_items(self):
        it = [f"""v_lshrrev_b32 v200, 4, v{vL}
v_and_b32 v201, 15, v{vL}
v_lshlrev_b32 v201, 2, v201
v_lshl_add_u32 v200, v200, 13, v201
s_lshl_b32 {sA}, {sCB}, 6
s_add_u32 {sA}, {sA}, {sXB}
s_add_u32 {sB}, {sA}, 4096"""]
        for i in range(8):
            it.append((f"buffer_load_dword v{vXQ+i}, v200, {X}, {sA if i < 4 else sB} offen offset:{1024*(i&3)}", "xq"))
        for T in range(3):
            it.append(f"""v_bfe_u32 v202, v{vL}, 3, 2
v_add_u32 v202, {4*T}, v202
v_add_u32 v202, {sODD}, v202
v_subrev_u32 v203, 11, v202
v_min_u32 v202, v202, v203""")
            it.append(f"""v_add_u32 v202, {sGS}, v202
v_and_b32 v203, 7, v{vL}
v_lshl_add_u32 v202, v202, 3, v203
v_min_u32 v202, 1375, v202
v_lshlrev_b32 v{204+T}, 1, v202""")
            it.append((f"global_load_short_d16_hi v{vB1+T}, v{204+T}, s[22:23]", "b1"))
        return it

    def mid(self):
        e = self.e
        for it in self.dots(7): e(it)
        e(f"""
s_lshl_b32 {sA}, {sW}, 2
s_add_u32 {sA}, {sA}, {CS}
v_add_u32 v200, {sA}, v{vL16}
v_permlane32_swap_b32 v{vCSA}, v{vCSA+1}
v_permlane32_swap_b32 v{vCSA+2}, v{vSS}
v_add_f32 v96, v{vCSA}, v{vCSA+1}
v_add_f32 v97, v{vCSA+2}, v{vSS}
ds_write_b32 v200, v96
ds_write_b32 v200, v97 offset:1024
v_mov_b32 v98, v97
v_and_b32 v201, 31, v{vL}
v_lshlrev_b32 v202, 4, v201
v_add_u32 v202, {CS}, v202
v_permlane32_swap_b32 v98, v97
""")
        e.wait(lg=0); e("s_barrier")
        self.stamp("g1_end")
        e("ds_read_b128 v[100:103], v202", "cs"); e("ds_read_b128 v[104:107], v202 offset:512", "cs"); e("ds_read_b128 v[108:111], v202 offset:1024", "cs")
        inv = fbits(1/512); eps = fbits(1e-5)
        st = f"""
v_mul_f32 v112, {inv}, v{ACC+32+12}
v_mul_f32 v113, {inv}, v97
v_fma_f32 v113, -v112, v112, v113
v_max_f32 v113, 0, v113
v_cvt_pk_bf16_f32 v114, 0, v112
v_cvt_pk_bf16_f32 v116, 0, v113
v_add_f32 v116, {eps}, v116
v_cvt_pk_bf16_f32 v116, 0, v116
v_sqrt_f32 v116, v116
v_sub_f32 v117, v112, v114
v_cvt_pk_bf16_f32 v116, 0, v116
v_rcp_f32 v115, v116
s_lshl_b32 {sA}, {sW}, 8
s_add_u32 {sA}, {sA}, {ST}
v_lshl_add_u32 v203, v201, 3, {sA}
ds_write_b64 v203, v[114:115]
v_mul_f32 v113, v113, v115
v_mul_f32 v117, v117, v115
v_lshrrev_b32 v203, 4, v{vL}
v_lshl_add_u32 v203, v203, 6, {sA}
""".strip().split("\n")
        st2 = f"""
v_mul_f32 v113, v113, v115
v_cvt_pk_bf16_f32 v117, 0, v117
v_cvt_pk_bf16_f32 v113, 0, v113
v_fma_f32 v117, v117, v116, v114
v_add_f32 v113, {eps}, v113
v_cvt_pk_bf16_f32 v113, 0, v113
v_sqrt_f32 v113, v113
v_cvt_pk_bf16_f32 v120, -v117, -v117
v_cvt_pk_bf16_f32 v113, 0, v113
v_and_b32 v118, 0xffff0000, v120
v_mul_f32 v113, v113, v116
v_sub_f32 v118, -v117, v118
v_cvt_pk_bf16_f32 v119, 0, v113
v_rcp_f32 v124, v113
v_sub_f32 v119, v113, v119
v_cvt_pk_bf16_f32 v121, v118, v113
v_cvt_pk_bf16_f32 v122, v119, 0
v_mov_b32 v123, 0
s_mov_b32 exec_lo, 0
v_mov_b32 v120, 0
v_mov_b32 v121, 0
v_mov_b32 v122, 0
s_mov_b32 exec_lo, -1
""".strip().split("\n")
        nw = self.opt.get("w2_post", 7)
        side = self.w2_items(range(21, 21 + nw))
        merge(e, st, side[:3])
        for j in range(4): e(f"ds_read_b128 {v(176+4*j,4)}, v203 offset:{16*j}", "st")
        idx = st2.index("s_mov_b32 exec_lo, 0")
        merge(e, st2, side[3:], 0, idx - 1)
        e.wait(vm="b1", lg="cs")
        for T in range(3):
            r = 100 + 4*T; d = 128 + 4*T
            e(f"""
v_pk_add_f32 {v(r,2)}, {v(r,2)}, {v(r+2,2)}
v_lshrrev_b32 v{d+2}, 16, v{vB1+T}
v_add_f32 v{r}, v{r}, v{r+1}
v_mov_b32 v{d+3}, 0
v_cvt_pk_bf16_f32 v{r+1}, 0, v{r}
v_cvt_pk_bf16_f32 v{d+1}, v{r}, v{vB1+T}
v_sub_f32 v{r+1}, v{r}, v{r+1}
v_cvt_pk_bf16_f32 v{d}, v{r}, v{r+1}
""")
        for T in range(3):
            e(f"v_mfma_f32_32x32x16_bf16 {v(ACC+16*T,16)}, {v(128+4*T,4)}, v[120:123], {v(ACC+16*T,16)}")
        e(f"""
v_lshrrev_b32 v200, 4, v{vL}
v_and_b32 v201, 15, v{vL}
v_lshlrev_b32 v200, 4, v200
v_lshl_add_u32 v200, v201, 13, v200
s_lshl_b32 {sA}, {sCB}, 17
s_lshr_b32 {sB}, {sXB}, 9
s_add_u32 {sA}, {sA}, {sB}
s_add_u32 {sA}, {sA}, {UT}
s_add_u32 {sB}, {sA}, 4096
""")
        e.wait(vm="xq", lg="st")
        for i in range(8):
            p = 140 + 2*i; m = 176 + 2*i
            e(f"""
v_lshlrev_b32 v{p}, 16, v{vXQ+i}
v_and_b32 v{p+1}, 0xffff0000, v{vXQ+i}
v_pk_add_f32 {v(p,2)}, {v(p,2)}, {v(m,2)} op_sel_hi:[1,0] neg_lo:[0,1] neg_hi:[0,1]
v_cvt_pk_bf16_f32 v{p+1}, v{p}, v{p+1}
v_lshlrev_b32 v{p}, 16, v{p+1}
v_and_b32 v{p+1}, 0xffff0000, v{p+1}
v_pk_mul_f32 {v(p,2)}, {v(p,2)}, {v(m,2)} op_sel:[0,1] op_sel_hi:[1,1]
""")
        for j in range(4):
            e(f"v_cvt_pk_bf16_f32 v{156+j}, v{140+4*j}, v{142+4*j}\nv_cvt_pk_bf16_f32 v{160+j}, v{141+4*j}, v{143+4*j}")
        e(f"buffer_store_dwordx4 v[156:159], v200, {WS}, {sA} offen sc1", "ut")
        e(f"buffer_store_dwordx4 v[160:163], v200, {WS}, {sB} offen sc1", "ut")
        self.stamp("xnT")
        c0 = -2*math.log2(math.e)*math.sqrt(2/math.pi)
        e(f"""
s_mov_b32 s84, {fbits(c0*0.044715)}
s_mov_b32 s85, {fbits(c0)}
s_lshl_b32 {sA}, {sTB}, 2
s_add_u32 {sA}, {sA}, {sW}
s_mul_i32 {sB}, {sA}, 86
s_add_u32 {sC}, {sGS}, {sODD}
s_lshr_b32 {sC}, {sC}, 1
s_add_u32 {sC}, {sC}, {sB}
s_lshl_b32 {sC}, {sC}, 10
s_add_u32 {sH0}, {sC}, {HB}
s_add_u32 {sH1}, {sH0}, 4096
s_movk_i32 {sC}, 5120
s_cmp_eq_u32 {sODD}, 1
s_cselect_b32 {sC}, {(-1024+8) & 0xffffffff}, {sC}
s_add_u32 {sD}, {sH0}, {sC}
s_cmp_ge_u32 {sCB}, 12
s_cselect_b32 {sD}, {WSN}, {sD}
s_lshl_b32 {sT2}, {sA}, 6
s_lshl_b32 {sC}, {sCB}, 2
s_add_u32 {sT2}, {sT2}, {sC}
s_add_u32 {sT2}, {sT2}, {FH}
s_lshl_b32 {sA}, {sA}, 2
s_lshl_b32 {sC}, {sCB}, 8
s_add_u32 {sT3}, {sA}, {sC}
""")
        for lam in range(11):
            r = ACC + 4*lam; t = 96 + 8*(lam & 1); o = 112 + 4*((lam >> 1) & 1) + 2*(lam & 1)
            z = [r, r+2]; tt = [t, t+2]; q = [t+4, t+6]
            for k in range(2): e(f"v_pk_mul_f32 {v(z[k],2)}, {v(z[k],2)}, v[124:125] op_sel_hi:[1,0]")
            for k in range(2): e(f"v_pk_mul_f32 {v(tt[k],2)}, {v(z[k],2)}, {v(z[k],2)}")
            for k in range(2): e(f"v_pk_fma_f32 {v(tt[k],2)}, {v(tt[k],2)}, {sG}, {sG} op_sel:[0,0,1] op_sel_hi:[1,0,1]")
            for k in range(2): e(f"v_pk_mul_f32 {v(tt[k],2)}, {v(tt[k],2)}, {v(z[k],2)}")
            for k in range(4): e(f"v_exp_f32 v{t+k}, v{t+k}")
            for k in range(2): e(f"v_pk_add_f32 {v(tt[k],2)}, {v(tt[k],2)}, 1.0 op_sel_hi:[1,0]")
            for k in range(4): e(f"v_rcp_f32 v{t+k}, v{t+k}")
            for k in range(2): e(f"v_pk_mul_f32 {v(tt[k],2)}, {v(tt[k],2)}, {v(z[k],2)}")
            for k in range(2): e(f"v_cvt_pk_bf16_f32 v{o+k}, v{tt[k]}, v{tt[k]+1}")
            if lam & 1:
                j = lam >> 1
                e(f"buffer_store_dwordx4 {v(o-2,4)}, v{vL16}, {WS}, {sH0 if j < 4 else sH1} offen offset:{1024*(j&3)} sc1", "h")
            if lam == 10:
                e(f"buffer_store_dwordx2 {v(o,2)}, v{vL16}, {WS}, {sD} offen sc1", "h")
            if lam == self.opt.get("fx_at", 5):
                e(f"v_and_b32 v204, 3, v{vL}\nv_lshlrev_b32 v204, 2, v204")
                self.poll_check(vF0, 204, DBG, "f0")
                e.wait(vm="ut")
                self.flag_store(sT3, "fx")
        self.stamp("gelu")

    def conv(self):
        e = self.e
        e(f"""
s_lshr_b32 {sA}, s2, 4
s_lshl_b32 {sA}, {sA}, 8
v_lshl_add_u32 v204, v{vL}, 2, {sA}
""")
        self.poll_issue(205, 204, WS, "pfx")
        e(f"""
s_lshr_b32 {sB}, {sW}, 1
s_and_b32 {sC}, {sW}, 1
s_lshl_b32 {sD}, {sC}, 10
s_mul_i32 {sA}, {sB}, 2176
s_add_u32 {sA}, {sA}, {KM + 48}
s_add_u32 {sT0}, {sA}, {sD}
v_add_u32 v200, {sT0}, v{vL16}
ds_read_b128 v[96:99], v200
ds_read_b128 v[100:103], v200 offset:16
s_mul_i32 {sT1}, {sB}, {KCS}
s_add_u32 {sT1}, {sT1}, {KC}
s_add_u32 {sT0}, {sT1}, {sD}
s_add_u32 {sT0}, {sT0}, 32
v_add_u32 v201, {sT0}, v{vL16}
s_cmp_eq_u32 {sC}, 1
s_cbranch_scc1 Lp_odd
""")
        snap = e.snapshot()
        e(f"""
v_lshrrev_b32 v130, 3, v{vL}
v_and_b32 v131, 7, v{vL}
v_cmp_lt_u32 vcc, 2, v130
v_add_u32 v132, 128, v130
s_sub_u32 {sA}, {sA}, 48
v_cndmask_b32 v130, v130, v132, vcc
v_cmp_lt_u32 vcc, 1, v131
v_lshlrev_b32 v132, 1, v131
v_lshl_add_u32 v132, v130, 4, v132
v_add_u32 v132, {sA}, v132
v_addc_co_u32 v130, vcc, -1, v130, vcc
s_mov_b32 exec_lo, 0xfffffffc
s_mov_b32 exec_hi, 0x3ff
ds_read_b128 v[124:127], v132
v_sub_u32 v131, 1, v131
v_and_b32 v131, 7, v131
v_mul_u32_u24 v131, 132, v131
v_add_u32 v130, v130, v131
v_lshl_add_u32 v130, v130, 4, {sT1}
""")
        e.wait(lg=0)
        e("ds_write_b128 v130, v[124:127]\ns_mov_b64 exec, -1\ns_branch Lp_done")
        e.restore(snap)
        e.label("Lp_odd")
        e(f"""
s_mul_i32 {sA}, {sB}, 320
s_add_u32 {sA}, {sA}, {T3M}
s_mul_i32 {sD}, {sB}, 1536
s_add_u32 {sD}, {sD}, {T3C}
v_lshrrev_b32 v130, 5, v{vL}
v_and_b32 v131, 31, v{vL}
v_lshlrev_b32 v131, 3, v131
v_mul_u32_u24 v132, 160, v130
v_add3_u32 v132, v132, v131, {sA}
v_mul_u32_u24 v130, 768, v130
v_add3_u32 v130, v130, v131, {sD}
s_mov_b32 exec_lo, 0x7ffff
s_mov_b32 exec_hi, 0x7ffff
ds_read2_b64 v[124:127], v132 offset1:1
""")
        e.wait(lg=0)
        e("""
v_alignbit_b32 v134, v125, v124, 16
v_alignbit_b32 v135, v126, v125, 16
v_mov_b32 v136, v125
v_mov_b32 v137, v126
v_alignbit_b32 v138, v126, v125, 16
v_alignbit_b32 v139, v127, v126, 16
ds_write_b64 v130, v[124:125]
ds_write_b64 v130, v[134:135] offset:192
ds_write_b64 v130, v[136:137] offset:384
ds_write_b64 v130, v[138:139] offset:576
s_mov_b64 exec, -1
""")
        e.label("Lp_done")
        e.lq = []
        def off(sig): return 16*(132*((1 - sig) & 7) + (1 if sig >= 2 else 0))
        e(f"ds_write_b128 v201, v[96:99] offset:{off(0)}\nds_write_b128 v201, v[98:101] offset:{off(4)}")
        for j in range(6): e(f"v_alignbit_b32 v{104+j}, v{97+j}, v{96+j}, 16")
        e(f"ds_write_b128 v201, v[104:107] offset:{off(1)}\nds_write_b128 v201, v[106:109] offset:{off(5)}")
        for j in range(6): e(f"v_mov_b32 v{110+j}, v{97+j}")
        e(f"ds_write_b128 v201, v[110:113] offset:{off(2)}\nds_write_b128 v201, v[112:115] offset:{off(6)}")
        for j in range(6): e(f"v_alignbit_b32 v{116+j}, v{98+j}, v{97+j}, 16")
        e(f"ds_write_b128 v201, v[116:119] offset:{off(3)}\nds_write_b128 v201, v[118:121] offset:{off(7)}")
        e(f"""
v_and_b32 v96, 15, v{vL}
v_lshrrev_b32 v97, 4, v{vL}
v_and_b32 v98, 7, v{vL}
v_bfe_u32 v99, v{vL}, 3, 1
v_mul_u32_u24 v98, 132, v98
v_sub_u32 v99, v97, v99
v_add3_u32 v98, v98, v99, 1
v_lshl_add_u32 v206, v98, 4, {sT1}
s_mul_i32 {sA}, {sB}, 4640
s_add_u32 {sA}, {sA}, {U}
v_lshl_add_u32 v98, v96, 1, v97
v_lshl_add_u32 v207, v98, 4, {sA}
s_mul_i32 {sD}, {sB}, 1536
s_add_u32 {sD}, {sD}, {T3C + 576 + 24}
v_and_b32 v98, 3, v{vL}
v_mul_u32_u24 v98, 192, v98
v_lshrrev_b32 v99, 2, v96
v_sub_u32 v99, v97, v99
v_lshlrev_b32 v99, 3, v99
v_sub_u32 v98, v99, v98
v_add_u32 v208, {sD}, v98
s_lshl_b32 {sD}, {sC}, 6
v_add_u32 v98, {sD}, v{vL}
v_cmp_gt_u32 vcc, 67, v98
v_lshlrev_b32 v99, 3, v98
v_mov_b32 v100, 4632
v_lshl_add_u32 v210, v98, 4, {sA}
v_cndmask_b32 v99, v100, v99, vcc
v_add_u32 v209, {sA}, v99
v_add_u32 v210, 536, v210
v_add_u32 v211, 2048, v210
v_lshrrev_b32 v98, 5, v{vL}
v_bfe_u32 v99, v{vL}, 2, 2
v_lshl_add_u32 v99, v98, 2, v99
v_bfe_u32 v100, v{vL}, 3, 1
s_and_b32 {sA}, {sW}, 1
v_xor_b32 v100, {sA}, v100
v_lshlrev_b32 v100, 6, v100
v_lshl_add_u32 v100, v99, 7, v100
v_and_b32 v101, 1, v97
v_lshl_add_u32 v100, v101, 5, v100
v_and_b32 v101, 3, v{vL}
v_lshl_add_u32 v100, v101, 3, v100
v_add_u32 v212, {sWREG}, v100
v_xor_b32 v213, 64, v212
v_add_u32 v214, {2*SL}, v212
v_add_u32 v215, {2*SL}, v213
s_lshl_b32 {sA}, s2, 1
s_add_u32 {sA}, {sA}, {sB}
s_lshl_b32 {sA}, {sA}, 12
s_add_u32 {sT1}, {sA}, {STB}
s_lshl_b32 {sD}, {sC}, 10
s_add_u32 {sA}, {sA}, {sD}
s_add_u32 {sA}, {sA}, {UT}
""")
        self.vK, self.vU, self.vT3, self.vW2R = 206, 207, 208, [[212, 213], [214, 215]]
        e.wait(vm="pfx")
        self.flag_store(sT2, "fh")
        self.poll_check(205, 204, WS, "pfx")
        self.stamp("fx_ok")
        e(f"buffer_load_dwordx4 v[96:99], v{vL16}, {WS}, {sA} offen sc1", "u")
        e(f"buffer_load_dwordx4 v[100:103], v{vL16}, {WS}, {sA} offen offset:2048 sc1", "u")
        e(f"s_mov_b32 {sX1}, {sT1}")
        e.wait(lg=0); e("s_barrier")
        e("v_mov_b32 v104, 0\nv_mov_b32 v105, 0"); e("ds_write_b64 v209, v[104:105]", "z")
        for i in range(8):
            for it in self.w2_reads(i, None): emit_item(e, it)
        e.wait(lg=0)
        nw = self.opt.get("w2_post", 7)
        side = self.w2_items(list(range(21 + nw, 44))) + self.g2_early_items()
        rd = [(f"ds_read_b128 {a(4*k,4)}, v206 offset:{64*(32-k)}", "ka") for k in range(33)]
        rd += [(f"ds_read_b64 {a(132+4*dl+2*par,2)}, v208 offset:{768*par+32*(3-dl)}", "ka") for dl in range(4) for par in range(2)]
        merge(e, rd, side)
        e.wait(vm="u")
        self.stamp("u_ok")
        e("ds_write2_b64 v210, v[96:97], v[98:99] offset1:1\nds_write2_b64 v211, v[100:101], v[102:103] offset1:1")
        e(f"""
s_lshl_b32 {sA}, {sTQ}, 7
s_add_u32 {sA}, {sA}, {FH}
v_and_b32 v204, 31, v{vL}
v_lshl_add_u32 v204, v204, 2, {sA}
v_and_b32 v106, 15, v{vL}
v_lshrrev_b32 v107, 4, v{vL}
v_lshlrev_b32 v106, 5, v106
v_lshl_add_u32 v244, v107, 3, v106
v_and_b32 v108, 1, v107
v_lshrrev_b32 v107, 1, v107
v_lshl_add_u32 v106, v107, 4, v106
v_lshl_add_u32 v245, v108, 9, v106
s_and_b32 {sA}, {sW}, 1
s_cmp_eq_u32 {sA}, 1
""")
        e.wait(lg=0); e("s_barrier\ns_cbranch_scc1 Lc_odd")
        snap = e.snapshot()
        self.conv_role([0,1,2,3,4], "a")
        e("s_branch Lc_done")
        end = e.snapshot()
        e.restore(snap)
        e.label("Lc_odd")
        self.conv_role([5,6,7], "b")
        assert e.vq == end[0], (e.vq, end[0])
        e.label("Lc_done")
        self.stamp("conv")

    def w2_reads(self, i, dst):
        out = []
        for dl in range(2):
            for half in range(2):
                slot, pos = self.w2pos(2*i + half); hi = 1 if slot == 3 else 0
                reg = a(148 + 8*i + 4*dl + 2*half, 2) if dst is None else v(dst + 4*dl + 2*half, 2)
                out.append((f"ds_read_b64_tr_b16 {reg}, v{self.vW2R[hi][dl]} offset:{(slot-2*hi)*SL + 1024*pos}", f"w2r{i}"))
        return out

    def conv_role(self, tiles, nm):
        e = self.e
        CA, BR, NB, BX = 176, 220, 5, 128
        accr = {n: CA + 4*k for k, n in enumerate(tiles)}
        qs = [q for q in range(8*tiles[-1], -9, -1) if any(0 <= 8*n - q <= 32 for n in tiles)]
        mps = list(range(tiles[-1] - 3))
        started = set()
        def rdB(k): e(f"ds_read_b128 {v(BR+4*(k%NB),4)}, v{self.vU} offset:{16*(4*qs[k]+32)}", f"b{k}")
        for mp in mps: e(f"ds_read_b128 {v(96+4*mp,4)}, v{self.vU} offset:{16*(32*mp+31)}", "bx")
        for k in range(NB-1): rdB(k)
        e.wait(lg="bx")
        for mp in mps:
            for par in range(2):
                e(f"v_mfma_f32_16x16x32_bf16 {v(BX+8*mp+4*par,4)}, {v(96+4*mp,4)}, {v(vBOX[par],4)}, 0")
        cvts = [f"v_cvt_pk_bf16_f32 v{160+4*mp+2*par+h}, v{BX+8*mp+4*par+2*h}, v{BX+8*mp+4*par+2*h+1}" for mp in mps for par in range(2) for h in range(2)]
        total = sum(1 for q in qs for n in tiles if 0 <= 8*n - q <= 32)
        p1, p2 = int(total*self.opt.get("fh_issue", 0.3)), int(total*self.opt.get("fh_check", 0.7))
        cnt = 0; side = []
        for k, q in enumerate(qs):
            e.wait(lg=f"b{k}")
            first = True
            for n in tiles:
                kap = 8*n - q
                if not 0 <= kap <= 32: continue
                e(f"v_mfma_f32_16x16x32_bf16 {v(accr[n],4)}, {a(4*kap,4)}, {v(BR+4*(k%NB),4)}, {v(accr[n],4) if n in started else 0}")
                started.add(n); cnt += 1
                if first and k + NB - 1 < len(qs): rdB(k + NB - 1)
                first = False
                if cnt >= 10 and cvts: e(cvts.pop(0))
                elif side: emit_item(e, side.pop(0))
                if cnt == p1: self.poll_issue(205, 204, WS, "pfh")
                if cnt == p2:
                    self.poll_check(205, 204, WS, "pfh")
                    side = self.g2_pre_items()
        assert not cvts
        for it in side: emit_item(e, it)
        for n in tiles:
            for mp in range(n - 3):
                e(f"v_mfma_f32_16x16x32_bf16 {v(accr[n],4)}, {v(160+4*mp,4)}, {a(132+4*(n-4-mp),4)}, {v(accr[n],4)}")
        k = 0; nst = 0
        while k < len(tiles):
            n = tiles[k]; r = accr[n]
            if k + 1 < len(tiles):
                e(f"""
v_cvt_pk_bf16_f32 v{r}, v{r}, v{r+1}
v_cvt_pk_bf16_f32 v{r+1}, v{r+2}, v{r+3}
v_cvt_pk_bf16_f32 v{r+2}, v{r+4}, v{r+5}
v_cvt_pk_bf16_f32 v{r+3}, v{r+6}, v{r+7}
v_permlane16_swap_b32 v{r}, v{r+2}
v_permlane16_swap_b32 v{r+1}, v{r+3}
""")
                e(f"buffer_store_dwordx4 {v(r,4)}, v245, {WS}, {sX1} offen offset:{512*n} sc1", "s"); k += 2
            else:
                e(f"v_cvt_pk_bf16_f32 v{r}, v{r}, v{r+1}\nv_cvt_pk_bf16_f32 v{r+1}, v{r+2}, v{r+3}")
                e(f"buffer_store_dwordx2 {v(r,2)}, v244, {WS}, {sX1} offen offset:{512*n} sc1", "s"); k += 1
            nst += 1
        if nst < 3:
            e(f"s_mov_b32 {sA}, {WSN}"); e(f"buffer_store_dword v{vONE1}, off, {WS}, {sA}", "s")

    HR, NH = 112, 6
    def hload(self, i):
        out = []
        for t, sh in enumerate((sH0, sH1)):
            pre = ""
            so = sh
            if i == 21:
                pre = f"s_add_u32 {sT0}, {sh}, {4096*i}\ns_cmp_ge_u32 {sW}, 2\ns_cselect_b32 {sT0}, {WSN}, {sT0}\n"; so = sT0
            elif i > 0:
                pre = f"s_add_u32 {sT0}, {sh}, {4096*i}\n"; so = sT0
            r = self.hreg(i, t)
            out.append((pre + f"buffer_load_dwordx4 {v(r,4)}, v{vL16}, {WS}, {so} offen sc1", f"h{i}"))
        return out
    def hreg(self, i, t):
        k = (i % self.NH)*2 + t
        return [112, 116, 120, 124, 8, 12, 16, 20, 32, 36, 40, 44][k]
    XR = [240, 242, 248, 250]
    def g2_early_items(self):
        it = [f"""s_lshr_b32 {sA}, {sW}, 1
s_lshl_b32 {sB}, {sTQ}, 1
s_add_u32 {sC}, {sB}, {sA}
s_mul_i32 {sH0}, {sC}, 86
s_add_u32 {sH0}, {sH0}, {sW}
s_lshl_b32 {sH0}, {sH0}, 10
s_add_u32 {sH0}, {sH0}, {HB}
s_xor_b32 {sD}, {sC}, 1
s_mul_i32 {sH1}, {sD}, 86
s_add_u32 {sH1}, {sH1}, {sW}
s_lshl_b32 {sH1}, {sH1}, 10
s_add_u32 {sH1}, {sH1}, {HB}""", f"""s_and_b32 {sA}, {sW}, 1
s_lshl_b32 {sB}, {sDQ}, 1
s_add_u32 {sA}, {sA}, {sB}
s_lshl_b32 {sX2}, {sA}, 6
s_lshl_b32 {sW1o}, {sC}, 15
s_add_u32 {sW1o}, {sW1o}, {sX2}
s_lshl_b32 {sROT}, {sA}, 17
s_lshl_b32 {sC}, {sC}, 6
s_add_u32 {sROT}, {sROT}, {sC}
s_add_u32 {sROT}, {sROT}, {STB}"""]
        it.append(f"v_lshrrev_b32 v216, 5, v{vL}\nv_lshlrev_b32 v216, 3, v216")
        it.append(f"v_and_b32 v217, 31, v{vL}\nv_lshl_add_u32 v217, v217, 10, v216")
        it.append(f"v_add_u32 v218, {sX2}, v216\nv_add_u32 v219, v217, v216")
        for q in range(4): it.append((f"global_load_dwordx2 {v(196+2*q,2)}, v218, s[26:27] offset:{16*q}", "b2"))
        for q in range(4): it.append((f"buffer_load_dwordx2 {v(self.XR[q],2)}, v217, {X}, {sW1o} offen offset:{16*q}", "x"))
        return it
    def g2_pre_items(self):
        it = []
        for i in range(self.NH): it += self.hload(i)
        return it
    def gemm2(self):
        e = self.e
        A2 = 48; WJ = [128, 136, 144]; SR = 160; SP = 168
        for i in (8, 9):
            for it in self.w2_reads(i, WJ[i % 3]): emit_item(e, it)
        e(f"""
s_lshl_b32 {sA}, s2, 4
s_lshl_b32 {sB}, {sW}, 2
s_add_u32 {sT2}, {sA}, {sB}
s_add_u32 {sT2}, {sT2}, {FS}
s_lshl_b32 {sA}, {sX2}, 2
s_add_u32 {sA}, {sA}, {FS}
v_lshl_add_u32 v204, v{vL}, 2, {sA}
v_lshrrev_b32 v206, 2, v{vL}
v_and_b32 v207, 3, v{vL}
v_lshlrev_b32 v208, 4, v207
v_lshl_add_u32 v206, v206, 12, v208
s_lshl_b32 {sA}, {sW}, 11
s_add_u32 {sA}, {sA}, {SS}
v_add_u32 v209, {sA}, v{vL16}
v_lshrrev_b32 v208, 5, v{vL}
v_bfe_u32 v210, v{vL}, 2, 2
v_lshl_add_u32 v208, v208, 2, v210
v_lshlrev_b32 v208, 6, v208
v_bfe_u32 v210, v{vL}, 4, 1
v_lshl_add_u32 v208, v210, 5, v208
v_lshl_add_u32 v208, v207, 3, v208
v_add_u32 v208, {sA}, v208
v_add_u32 v176, {sWREG}, v{vL16}
""")
        for j in range(1, 4):
            e(f"s_xor_b32 {sA}, {sW}, {j}\ns_mul_i32 {sA}, {sA}, {WREG}\nv_add_u32 v{176+j}, {sA}, v{vL16}")
        e.wait(vm="b2")
        for q in range(4):
            for h in range(2):
                e(f"v_lshlrev_b32 v{A2+4*q+2*h}, 16, v{196+2*q+h}\nv_and_b32 v{A2+4*q+2*h+1}, 0xffff0000, v{196+2*q+h}")
        o = self.opt
        for i in range(22):
            e.wait(vm=f"h{i}", lg=(f"w2r{i}" if i >= 8 else None))
            if i == 0: self.stamp("h0")
            sh = self.hload(i + self.NH) if i + self.NH < 22 else []
            sw = self.w2_reads(i + 2, WJ[(i + 2) % 3]) if 8 <= i < 20 else []
            after = {0: sw[:2], 1: sh[:1], 2: sw[2:], 3: sh[1:]}
            for j in range(4):
                tl, dl = j >> 1, j & 1
                Areg = a(148 + 8*i + 4*dl, 4) if i < 8 else v(WJ[i % 3] + 4*dl, 4)
                init = (i == 0 and j > 0)
                e(f"v_mfma_f32_32x32x16_bf16 {v(A2+16*j,16)}, {Areg}, {v(self.hreg(i,tl),4)}, {0 if init else v(A2+16*j,16)}")
                for it in after[j]: emit_item(e, it)
            if i == o.get("fs_at", 2):
                e.wait(vm="s"); self.flag_store(sT2, "fs")
            if i == o.get("fs_issue", 9): self.poll_issue(205, 204, WS, "pfs")
            if i == o.get("fs_check", 13):
                self.poll_check(205, 204, WS, "pfs")
                e(f"s_add_u32 {sA}, {sROT}, 65536")
                e(f"buffer_load_dwordx4 {v(SR,4)}, v206, {WS}, {sROT} offen sc1", "sl")
                e(f"buffer_load_dwordx4 {v(SR+4,4)}, v206, {WS}, {sA} offen sc1", "sl")
            if i == o.get("s_wr", 18):
                e.wait(vm="sl")
                e(f"ds_write_b128 v209, {v(SR,4)}\nds_write_b128 v209, {v(SR+4,4)} offset:1024")
                for q in range(4): e(f"ds_read_b64_tr_b16 {v(SP+2*q,2)}, v208 offset:{512*q}", "sp")
        self.stamp("g2_end")
        XU, SU = 180, 196
        e.wait(vm="x", lg="sp")
        for k in range(8):
            xr = self.XR[k >> 1] + (k & 1)
            e(f"v_lshlrev_b32 v{XU+2*k}, 16, v{xr}\nv_and_b32 v{XU+2*k+1}, 0xffff0000, v{xr}")
        for j in range(1, 4):
            for q in range(4): e(f"ds_write_b128 v176, {v(A2+16*j+4*q,4)} offset:{(j-1)*SL+1024*q}", "rw")
        for k in range(8):
            e(f"v_lshlrev_b32 v{SU+2*k}, 16, v{SP+k}\nv_and_b32 v{SU+2*k+1}, 0xffff0000, v{SP+k}")
        e(f"s_mov_b32 s84, {fbits(-math.log2(math.e))}")
        e.wait(lg=0); e("s_barrier")
        self.stamp("red")
        for q in range(4):
            for j in range(1, 4): e(f"ds_read_b128 {v(A2+16*j+4*q,4)}, v{176+j} offset:{(j-1)*SL+1024*q}", f"rr{q}")
        for q in range(4):
            e.wait(lg=f"rr{q}")
            z = [A2+4*q, A2+4*q+2]; t = 112 + 4*q; tt = [t, t+2]
            for k in range(2): e(f"v_pk_add_f32 {v(z[k],2)}, {v(z[k],2)}, {v(z[k]+16,2)}")
            for k in range(2): e(f"v_pk_add_f32 {v(z[k]+32,2)}, {v(z[k]+32,2)}, {v(z[k]+48,2)}")
            for k in range(2): e(f"v_pk_add_f32 {v(z[k],2)}, {v(z[k],2)}, {v(z[k]+32,2)}")
            for k in range(2): e(f"v_pk_mul_f32 {v(tt[k],2)}, {v(z[k],2)}, {sG} op_sel_hi:[1,0]")
            for k in range(4): e(f"v_exp_f32 v{t+k}, v{t+k}")
            for k in range(2): e(f"v_pk_mul_f32 {v(z[k],2)}, {v(z[k],2)}, {v(SU+4*q+2*k,2)}")
            for k in range(2): e(f"v_pk_add_f32 {v(tt[k],2)}, {v(tt[k],2)}, 1.0 op_sel_hi:[1,0]")
            for k in range(4): e(f"v_rcp_f32 v{t+k}, v{t+k}")
            e("s_nop 0")
            for k in range(2): e(f"v_pk_fma_f32 {v(tt[k],2)}, {v(tt[k],2)}, {v(z[k],2)}, {v(XU+4*q+2*k,2)}")
            for k in range(2): e(f"v_cvt_pk_bf16_f32 v{128+2*q+k}, v{tt[k]}, v{tt[k]+1}")
            if q & 1:
                r = 128 + 2*(q-1)
                e(f"v_permlane32_swap_b32 v{r}, v{r+2}\nv_permlane32_swap_b32 v{r+1}, v{r+3}")
                e(f"buffer_store_dwordx4 {v(r,4)}, v219, {OUT}, {sW1o} offen offset:{16*(q-1)}", "o")

    def build(self):
        e = self.e
        if self.stamps: e(f"s_memrealtime s[96:97]\ns_memtime s[100:101]")
        self.prologue(); self.kgen()
        done = self.stop_here("kgen")
        if not done: self.gemm1(); self.mid(); done = self.stop_here("mid")
        if not done: self.conv(); done = self.stop_here("conv")
        if not done: self.gemm2()
        e.label("Lfin")
        if self.dump:
            base, n = self.dump
            e("s_waitcnt vmcnt(0) lgkmcnt(0)\ns_barrier")
            e(f"v_lshlrev_b32 v100, 4, v0\nv_add_u32 v101, {base}, v100\ns_lshl_b32 {sA}, s2, 16\ns_add_u32 {sA}, {sA}, {0x1000000}")
            for k in range(n):
                e(f"ds_read_b128 v[104:107], v101 offset:{4096*k}\ns_waitcnt lgkmcnt(0)\nbuffer_store_dwordx4 v[104:107], v100, {WS}, {sA} offen\ns_add_u32 {sA}, {sA}, 4096\ns_nop 1")
        if self.stamps:
            self.stamp("end")
            e("s_waitcnt vmcnt(0)")
            self.stamp("drain")
            self.stamp("endreal", real=True)
            e(f"v_writelane_b32 v{vST}, s96, 62\nv_writelane_b32 v{vST}, s100, 63")
            e(f"s_lshl_b32 {sA}, s2, 10\ns_add_u32 {sA}, {sA}, {DBGW}\nv_lshlrev_b32 v100, 2, v0\nbuffer_store_dword v{vST}, v100, {WS}, {sA} offen")
        e.label("Lend")
        e("s_endpgm")
        e.label("Lcodeend")
        body = e.finish()
        head = open("cdna_kernels/" + NAME + ".s.ref").read().split("; Override launch")[0]
        return (head + f"; @launch grid=(256,1,1) block=(256,1,1) lds={LDS_BYTES}\n"
                + f""".amdgcn_target "amdgcn-amd-amdhsa--gfx950"
.text
.globl {NAME}_kernel
.p2align 8
.type {NAME}_kernel,@function
{NAME}_kernel:
""" + body + f""".section .rodata,"a"
.p2align 6
.amdhsa_kernel {NAME}_kernel
  .amdhsa_next_free_vgpr 512
  .amdhsa_next_free_sgpr 102
  .amdhsa_accum_offset 256
  .amdhsa_group_segment_fixed_size 0
  .amdhsa_kernarg_size 120
  .amdhsa_user_sgpr_count 2
  .amdhsa_user_sgpr_kernarg_segment_ptr 1
  .amdhsa_system_sgpr_workgroup_id_x 1
.end_amdhsa_kernel
""")

if __name__ == "__main__":
    import argparse, json
    ap = argparse.ArgumentParser()
    ap.add_argument("out"); ap.add_argument("--stop"); ap.add_argument("--stamps", action="store_true")
    ap.add_argument("--rot", default="xcd"); ap.add_argument("--dump"); ap.add_argument("--opt", default="{}")
    A = ap.parse_args()
    g = G(stop=A.stop, stamps=A.stamps, rot=A.rot, dump=tuple(int(x) for x in A.dump.split(",")) if A.dump else None, opt=json.loads(A.opt))
    s = g.build()
    open(A.out, "w").write(s)
    open(A.out + ".names", "w").write(json.dumps(g.stnames))
    print("instructions", len(g.e.L), "nops", g.e.nops)
```
